```python
import torch

def _softmax(x, axis=-1):
    return torch.softmax(x, dim=axis)
def _gelu(x):
    return torch.nn.functional.gelu(x, approximate="tanh")
def _silu(x):
    return torch.nn.functional.silu(x)
def _sigmoid(x):
    return torch.sigmoid(x)
def _layernorm(x, axis=-1, eps=1e-5):
    m = x.mean(dim=axis, keepdim=True)
    v = x.var(dim=axis, keepdim=True, unbiased=False)
    return (x - m) / torch.sqrt(v + eps)
def _scatter_add(tgt, idx, src, axis=0):
    return tgt.clone().index_add_(axis, idx, src)
def _segment_sum(src, seg, n):
    out = torch.zeros((n,) + src.shape[1:], dtype=src.dtype)
    return out.index_add_(0, seg, src)
def _pad(x, pw):
    flat = tuple(v for pair in reversed(pw) for v in pair)
    return torch.nn.functional.pad(x, flat)

kernel_name = 'sequential_preLN__compressed_kv_cla__glu_gated_reglu__prompt'

def setup_inputs():

    _w = (lambda a: (lambda t: t.to(torch.bfloat16) if t.is_floating_point() else t)(torch.as_tensor(a)))
    def _A_setup():
        B, H, Sq, Sk, D, M = 1, 16, 2048, 2048, 256, 448
        Dc = 4 * D
        return {
            "x": _w((lambda *s: torch.randn(*s, dtype=torch.bfloat16) * 0.05)(B, Sq, M)),
            "c_kv": _w((lambda *s: torch.randn(*s, dtype=torch.bfloat16) * 0.4)(B, Sk, Dc)),
            "w_q": _w((lambda *s: torch.randn(*s, dtype=torch.bfloat16) * 1.6)(M, H, D) * (M ** -0.5)),
            "w_uk": _w((lambda *s: torch.randn(*s, dtype=torch.bfloat16) * 1.6)(Dc, H, D) * (Dc ** -0.5)),
            "w_uv": _w((lambda *s: torch.randn(*s, dtype=torch.bfloat16) * 0.4)(Dc, H, D) * (Dc ** -0.5)),
            "w_o": _w((lambda *s: torch.randn(*s, dtype=torch.bfloat16) * 0.4)(H, D, M) * ((H * D) ** -0.5)),
        }
    _A_in = _A_setup()

    def _B_setup():
        B, S, D, F = 1, 2048, 448, 1792
        return {
            "x": _w((lambda *s: torch.randn(*s, dtype=torch.bfloat16) * 0.05)(B, S, D)),
            "W_gate": _w((lambda *s: torch.randn(*s, dtype=torch.bfloat16) * 0.2)(D, F) * (2.0 / D) ** 0.5),
            "W_up": _w((lambda *s: torch.randn(*s, dtype=torch.bfloat16) * 0.2)(D, F) * (2.0 / D) ** 0.5),
            "W_down": _w((lambda *s: torch.randn(*s, dtype=torch.bfloat16) * 0.2)(F, D) * (1.0 / F) ** 0.5),
        }
    _B_in = _B_setup()

    return {
        "A_x": _A_in["x"],
        "A_c_kv": _A_in["c_kv"],
        "A_w_q": _A_in["w_q"],
        "A_w_uk": _A_in["w_uk"],
        "A_w_uv": _A_in["w_uv"],
        "A_w_o": _A_in["w_o"],
        "B_x": _B_in["x"],
        "B_W_gate": _B_in["W_gate"],
        "B_W_up": _B_in["W_up"],
        "B_W_down": _B_in["W_down"],
    }

def reference(A_x, A_c_kv, A_w_q, A_w_uk, A_w_uv, A_w_o, B_x, B_W_gate, B_W_up, B_W_down):
    def _A_ref(x, c_kv, w_q, w_uk, w_uv, w_o):
        B, Sq, M = x.shape[0], x.shape[1], x.shape[2]
        Sk = c_kv.shape[1]
        H, D = w_q.shape[1], w_q.shape[2]
        q = torch.einsum("bqm,mhd->bhqd", x, w_q)
        k = torch.einsum("bkc,chd->bhkd", c_kv, w_uk)
        v = torch.einsum("bkc,chd->bhkd", c_kv, w_uv)
        scores = torch.einsum("bhqd,bhkd->bhqk", q, k) * (D ** -0.5)
        off = Sk - Sq
        qi = torch.arange(Sq)[:, None]
        kj = torch.arange(Sk)[None, :]
        cmask = kj <= (qi + off)
        scores = torch.where(cmask[None, None], scores, -1e9)
        p = _softmax(scores, axis=-1)
        ctx = torch.einsum("bhqk,bhkd->bhqd", p, v)
        return torch.einsum("bhqd,hdm->bqm", ctx, w_o)

    def _B_ref(x, W_gate, W_up, W_down):
        gate = torch.einsum("bsd,df->bsf", x, W_gate)
        up = torch.einsum("bsd,df->bsf", x, W_up)
        gate = gate * (lambda x, dt: x.to(dt))(gate > 0, gate.dtype)
        h = gate * up
        return torch.einsum("bsf,fd->bsd", h, W_down)

    x = A_x
    h = x + _A_ref(_layernorm(x, axis=-1), A_c_kv, A_w_q, A_w_uk, A_w_uv, A_w_o)
    h2 = h + _B_ref(_layernorm(h, axis=-1), B_W_gate, B_W_up, B_W_down)
    return h2
```

```python
class Asm:
    def __init__(self):
        self.L = []
    def __call__(self, s):
        for line in s.split("\n"):
            self.L.append(line)
    def text(self):
        return "\n".join(self.L) + "\n"

def vr(a, n=1):
    return f"v{a}" if n == 1 else f"v[{a}:{a+n-1}]"
def ar(a, n=1):
    return f"a{a}" if n == 1 else f"a[{a}:{a+n-1}]"
def sr(a, n=1):
    return f"s{a}" if n == 1 else f"s[{a}:{a+n-1}]"

def kernel_head(A, name):
    A(f".globl {name}\n.p2align 8\n.type {name},@function\n{name}:")

def kernel_desc(A, name, vgpr, sgpr=102, accum=None):
    accum = accum if accum is not None else (min(256, (vgpr + 3) // 4 * 4))
    A(f".p2align 6\n.amdhsa_kernel {name}")
    A(f"  .amdhsa_next_free_vgpr {vgpr}\n  .amdhsa_next_free_sgpr {sgpr}\n  .amdhsa_accum_offset {accum}")
    A("  .amdhsa_group_segment_fixed_size 0\n  .amdhsa_kernarg_size 104\n  .amdhsa_user_sgpr_count 2")
    A("  .amdhsa_user_sgpr_kernarg_segment_ptr 1\n  .amdhsa_system_sgpr_workgroup_id_x 1")
    A("  .amdhsa_float_denorm_mode_32 3")
    A(".end_amdhsa_kernel")

def srd(A, s, base_lo, base_hi, off, size):
    if off == 0:
        A(f"s_mov_b32 s{s}, {base_lo}\ns_mov_b32 s{s+1}, {base_hi}")
    else:
        A(f"s_add_u32 s{s}, {base_lo}, {off}\ns_addc_u32 s{s+1}, {base_hi}, 0")
    A(f"s_mov_b32 s{s+2}, {size}\ns_mov_b32 s{s+3}, 0x20000")

def interleave(A, main, fills, tail=None):
    for s in fills.get(-1, []): A(s)
    for i, m in enumerate(main):
        A(m)
        for s in fills.get(i, []): A(s)

def spread(fills, items, start, end):
    n = len(items)
    for k, it in enumerate(items):
        idx = start + (k * (end - start + 1)) // max(n, 1)
        lst = it if isinstance(it, list) else [it]
        fills.setdefault(idx, []).extend(lst)

class Stamps:
    def __init__(self, enabled, base_s=60):
        self.en = enabled; self.n = 0; self.b = base_s
    def stamp(self, A):
        if not self.en: return
        A(f"s_memrealtime s[{self.b+2*self.n}:{self.b+2*self.n+1}]"); self.n += 1
    def cyc(self, A):
        if not self.en: return
        A(f"s_memtime s[{self.b+2*self.n}:{self.b+2*self.n+1}]"); self.n += 1
    def flush(self, A, ws_lo, ws_hi, region, wg="s2"):
        if not self.en: return
        A("s_waitcnt lgkmcnt(0) vmcnt(0)")
        A(f"s_add_u32 s96, {ws_lo}, {region}\ns_addc_u32 s97, {ws_hi}, 0\ns_mov_b32 s98, 0x100000\ns_mov_b32 s99, 0x20000")
        A(f"s_lshl_b32 s95, {wg}, 7")
        A("v_cmp_eq_u32 vcc, 0, v0\ns_and_saveexec_b64 s[92:93], vcc")
        A("v_mov_b32 v1, s95")
        for k in range(self.n):
            A(f"v_mov_b32 v2, s{self.b+2*k}\nbuffer_store_dword v2, v1, s[96:99], 0 offen offset:{4*k}\ns_nop 1")
        A("s_waitcnt vmcnt(0)\ns_mov_b64 exec, s[92:93]")
```

```python
from fw import *
from layout import *

def wave_allsum(A, v, t):
    for rot in (8, 4, 2, 1):
        A("s_nop 1")
        for x in v: A(f"v_add_f32_dpp v{x}, v{x}, v{x} row_ror:{rot} row_mask:0xf bank_mask:0xf")
    for sw in ("v_permlane16_swap_b32", "v_permlane32_swap_b32"):
        for x, y in zip(v, t): A(f"v_mov_b32 v{y}, v{x}")
        A("s_nop 1")
        for x, y in zip(v, t): A(f"{sw} v{x}, v{y}")
        A("s_nop 1")
        for x, y in zip(v, t): A(f"v_add_f32 v{x}, v{x}, v{y}")

def gen_k0(A, name="k0_ln_kernel", src=None, dst=XN):
    P = name[:3].upper()
    kernel_head(A, name)
    A(f"s_cmp_ge_u32 s2, 256\ns_cbranch_scc1 {P}_end")
    A("s_load_dwordx2 s[4:5], s[0:1], 0\ns_load_dwordx2 s[6:7], s[0:1], 96")
    A("v_and_b32 v1, 63, v0\nv_lshrrev_b32 v2, 6, v0")
    A("s_lshl_b32 s3, s2, 3\nv_lshlrev_b32 v3, 1, v2\nv_add_u32 v3, s3, v3")
    A("s_movk_i32 s20, 896\nv_mul_lo_u32 v3, v3, s20\nv_lshlrev_b32 v4, 4, v1\nv_add_u32 v3, v3, v4\nv_add_u32 v5, 896, v3")
    A("v_cmp_gt_u32 s[22:23], 56, v1")
    A("v_mov_b32 v6, 0x80000000")
    A("s_nop 1")
    A("v_cndmask_b32 v3, v6, v3, s[22:23]\nv_cndmask_b32 v5, v6, v5, s[22:23]")
    A("s_waitcnt lgkmcnt(0)")
    if src is None: srd(A, 8, "s4", "s5", 0, 2048 * 896)
    else: srd(A, 8, "s6", "s7", src, 2048 * 896)
    srd(A, 12, "s6", "s7", dst, 2048 * 896)
    A("buffer_load_dwordx4 v[8:11], v3, s[8:11], 0 offen\nbuffer_load_dwordx4 v[12:15], v5, s[8:11], 0 offen")
    A("s_waitcnt vmcnt(0)")
    for r in range(2):
        for i in range(4):
            A(f"v_lshlrev_b32 v{16+8*r+2*i}, 16, v{8+4*r+i}")
            A(f"v_and_b32 v{16+8*r+2*i+1}, 0xffff0000, v{8+4*r+i}")
    for r in range(2):
        b = 16 + 8 * r
        A(f"v_add_f32 v{32+r}, v{b}, v{b+1}")
        for i in range(2, 8): A(f"v_add_f32 v{32+r}, v{32+r}, v{b+i}")
    wave_allsum(A, [32, 33], [34, 35])
    A(f"s_mov_b32 s20, {float_hex(1.0/448)}")
    for r in range(2): A(f"v_mul_f32 v{32+r}, s20, v{32+r}")
    for r in range(2):
        b = 16 + 8 * r
        for i in range(8): A(f"v_sub_f32 v{b+i}, v{b+i}, v{32+r}")
    A("v_mov_b32 v40, 0")
    for r in range(2):
        b = 16 + 8 * r
        A(f"v_mul_f32 v{36+r}, v{b}, v{b}")
        for i in range(1, 8): A(f"v_fmac_f32 v{36+r}, v{b+i}, v{b+i}")
        A(f"v_cndmask_b32 v{36+r}, v40, v{36+r}, s[22:23]")
    wave_allsum(A, [36, 37], [34, 35])
    A(f"s_mov_b32 s21, {float_hex(1e-5)}")
    for r in range(2):
        A(f"v_mov_b32 v38, s21\nv_fmac_f32 v38, s20, v{36+r}\nv_rsq_f32 v{36+r}, v38")
    A("s_nop 0")
    for r in range(2):
        b = 16 + 8 * r
        for i in range(8): A(f"v_mul_f32 v{b+i}, v{b+i}, v{36+r}")
        for i in range(4): A(f"v_cvt_pk_bf16_f32 v{8+4*r+i}, v{b+2*i}, v{b+2*i+1}")
    A("buffer_store_dwordx4 v[8:11], v3, s[12:15], 0 offen\nbuffer_store_dwordx4 v[12:15], v5, s[12:15], 0 offen")
    A(f"{P}_end:\ns_endpgm")
    return name

import struct
def float_hex(f):
    return "0x%08x" % struct.unpack("<I", struct.pack("<f", f))[0]
```

```python
from fw import *
from layout import *
from k0 import float_hex

V_L, V_T0, V_T1, V_T2, V_T3 = 1, 2, 3, 4, 5
V_ADMA = 8
V_WDMA = 12
V_RAP = 16
V_RA = 18
V_RW = 20
V_ST = 24
FR = [64, 128]
S_W, S_WR, S_WC = 20, 21, 22
S_KW, S_KA, S_SLOTD, S_SLOTR, S_IT = 23, 24, 25, 26, 27
S_M0W, S_M0A, S_T = 28, 29, 30
S_A, S_B, S_O = 8, 12, 16
LDS_A = 65536

def gemm_phase(A, tag, nI, order, rowstride, n_iters, a_rows_per_wave_log2, ST=None, wstride=8192):
    nAd = nI // 2
    def dma_w(slot):
        L = [f"s_add_u32 m0, s{S_M0W}, {slot*16384}", "s_nop 0"]
        L += [f"buffer_load_dwordx4 v{V_WDMA+n}, s[{S_B}:{S_B+3}], s{S_KW} offen offset:{n*1024} lds" for n in range(4)]
        L += [f"s_add_u32 s{S_KW}, s{S_KW}, {32*wstride}"]
        return L
    def dma_a(half):
        L = [f"s_add_u32 m0, s{S_M0A}, s{S_SLOTD}"]
        if nI == 8:
            if half: L += [f"s_add_u32 m0, m0, 4096"]
            so = S_KA if half == 0 else S_T
            pre = [] if half == 0 else [f"s_add_u32 s{S_T}, s{S_KA}, {32*rowstride}"]
            L = pre + L + ["s_nop 0"]
            L += [f"buffer_load_dwordx4 v{V_ADMA+n}, s[{S_A}:{S_A+3}], s{so} offen offset:{n*1024} lds" for n in range(4)]
        else:
            L += ["s_nop 0"]
            L += [f"buffer_load_dwordx4 v{V_ADMA+n}, s[{S_A}:{S_A+3}], s{S_KA} offen offset:{n*1024} lds" for n in (2*half, 2*half+1)]
        if half == 1:
            L += [f"s_add_u32 s{S_KA}, s{S_KA}, 128",
                  f"s_add_u32 s{S_SLOTD}, s{S_SLOTD}, 32768", f"s_cmp_eq_u32 s{S_SLOTD}, 98304", f"s_cselect_b32 s{S_SLOTD}, 0, s{S_SLOTD}"]
        return L
    def reads(set_, wslot, u):
        fa = FR[set_]; fw = fa + 32
        L = []
        wl = []
        for j in range(8):
            for h in range(2):
                wl.append(f"ds_read_b64_tr_b16 v[{fw+4*j+2*h}:{fw+4*j+2*h+1}], v{V_RW+(j&3)} offset:{wslot*16384+(j>>2)*4096+h*1024}")
        al = [f"ds_read_b128 v[{fa+4*i}:{fa+4*i+3}], v{V_RA+u} offset:{2048*i}" for i in range(nI)]
        L = [al[0]] + wl + al[1:]
        return L
    def newslot_r():
        return [f"v_add_u32 v{V_RA}, s{S_SLOTR}, v{V_RAP}", f"v_add_u32 v{V_RA+1}, s{S_SLOTR}, v{V_RAP+1}",
                f"s_add_u32 s{S_SLOTR}, s{S_SLOTR}, 32768", f"s_cmp_eq_u32 s{S_SLOTR}, {LDS_A+98304}", f"s_cselect_b32 s{S_SLOTR}, {LDS_A}, s{S_SLOTR}"]
    nper = 8 if nI == 8 else 6
    A(f"s_mov_b32 s{S_KW}, 0\ns_mov_b32 s{S_KA}, 0\ns_mov_b32 s{S_SLOTD}, 0\ns_mov_b32 s{S_SLOTR}, {LDS_A}")
    for s in dma_a(0) + dma_a(1): A(s)
    for s in dma_w(0): A(s)
    for s in dma_w(1): A(s)
    for s in dma_a(0) + dma_a(1): A(s)
    for s in dma_w(2): A(s)
    for s in dma_w(3): A(s)
    for s in dma_a(0): A(s)
    for i in range(nI * 8 * 4): A(f"v_accvgpr_write_b32 a{i}, 0")
    tot = 2 * nAd * 2 + 16 + nAd
    A(f"s_waitcnt vmcnt({tot - (2*nAd + 4)})")
    A("s_barrier")
    for s in newslot_r(): A(s)
    A("s_nop 0")
    for s in reads(0, 0, 0): A(s)
    A(f"s_waitcnt vmcnt({tot - (2*nAd + 8)}) lgkmcnt(0)")
    A("s_barrier")
    A(f"s_mov_b32 s{S_IT}, 0")
    if ST: ST.stamp(A)
    A(f"{tag}_loop:")
    for sub in range(4):
        cur = sub & 1; nxt = cur ^ 1
        fa = FR[cur]; fw = fa + 32
        main = []
        for i in range(nI):
            for j in range(8):
                acc = ar((i * 8 + j) * 4, 4)
                a_, w_ = vr(fa + 4 * i, 4), vr(fw + 4 * j, 4)
                if order == 'V': main.append(f"v_mfma_f32_16x16x32_bf16 {acc}, {a_}, {w_}, {acc}")
                else: main.append(f"v_mfma_f32_16x16x32_bf16 {acc}, {w_}, {a_}, {acc}")
        nm = len(main)
        fills = {}
        u = (sub + 1) & 1
        rd = reads(nxt, (sub + 1) & 3, u)
        pre = newslot_r() if u == 0 else []
        dm = dma_w(sub)
        da = dma_a(0 if (sub & 1) else 1)
        endgap = nm - 5
        fills[-1] = []
        if pre:
            fills.setdefault(0, []).extend(pre[:2]); fills.setdefault(1, []).extend(pre[2:])
            spread(fills, rd, 2, endgap - 6)
        else:
            spread(fills, rd, 0, endgap - 6)
        dl = []
        dl.append(dm[0:3]); dl += [[x] for x in dm[3:6]]; dl[-1] = dl[-1] + dm[6:]
        k = 0
        while not da[k].startswith("buffer"): k += 1
        dl.append(da[:k + 1]); rest = da[k + 1:]
        bl = [x for x in rest if x.startswith("buffer")]; sl = [x for x in rest if not x.startswith("buffer")]
        dl += [[x] for x in bl]; dl[-1] = dl[-1] + sl
        spread(fills, dl, 1, endgap - 1)
        fills.setdefault(endgap, []).extend([f"s_waitcnt vmcnt({2*nper}) lgkmcnt(0)", "s_barrier"])
        interleave(A, main, fills)
    A(f"s_add_u32 s{S_IT}, s{S_IT}, 1\ns_cmp_lt_u32 s{S_IT}, {n_iters}\ns_cbranch_scc1 {tag}_loop")

def epilogue(A, nI, order, scale=None):
    T = 192
    A("s_nop 7")
    cnt = 0
    if order == 'K':
        for i in range(nI):
            for jp in range(4):
                t = T + (cnt % 4) * 16
                for h in range(2):
                    for r in range(4):
                        A(f"v_accvgpr_read_b32 v{t+4*h+r}, a{(i*8+2*jp+h)*4+r}")
                if scale is not None:
                    for r in range(0, 8, 2): A(f"v_pk_mul_f32 v[{t+r}:{t+r+1}], v[{t+r}:{t+r+1}], s[34:35]")
                for r in range(4): A(f"v_cvt_pk_bf16_f32 v{t+8+r}, v{t+2*r}, v{t+2*r+1}")
                A(f"buffer_store_dwordx4 v[{t+8}:{t+11}], v{V_ST}, s[{S_O}:{S_O+3}], s{S_T} offen offset:{jp*1024}")
                cnt += 1
            A(f"s_add_u32 s{S_T}, s{S_T}, 8192")
    else:
        for ip in range(nI // 2):
            for j in range(8):
                t = T + (cnt % 4) * 16
                for h in range(2):
                    for r in range(4):
                        A(f"v_accvgpr_read_b32 v{t+4*h+r}, a{((2*ip+h)*8+j)*4+r}")
                for r in range(4): A(f"v_cvt_pk_bf16_f32 v{t+8+r}, v{t+2*r}, v{t+2*r+1}")
                A(f"buffer_store_dwordx4 v[{t+8}:{t+11}], v{V_ST}, s[{S_O}:{S_O+3}], s{S_T} offen offset:{(j&3)*1024}")
                cnt += 1
                if j == 3: A(f"s_add_u32 s{S_T}, s{S_T}, 4096")
            A(f"s_add_u32 s{S_T}, s{S_T}, {16384-4096}")

def setup_addr(A, rowstride, rows_per_wave, nI):
    A(f"v_lshrrev_b32 v{V_T0}, 3, v{V_L}")
    A(f"s_mul_i32 s{S_T}, s{S_W}, {rows_per_wave}")
    A(f"v_add_u32 v{V_T0}, s{S_T}, v{V_T0}")
    A(f"s_mov_b32 s{S_T}, {rowstride}")
    A(f"v_mul_lo_u32 v{V_T0}, v{V_T0}, s{S_T}")
    A(f"v_lshrrev_b32 v{V_T1}, 4, v{V_L}")
    A(f"v_and_b32 v{V_T2}, 7, v{V_L}")
    for n in range(4):
        A(f"v_xor_b32 v{V_T3}, {(4*n)&7}, v{V_T1}")
        A(f"v_xor_b32 v{V_T3}, v{V_T3}, v{V_T2}")
        A(f"v_lshlrev_b32 v{V_T3}, 4, v{V_T3}")
        A(f"v_add_u32 v{V_T3}, v{V_T3}, v{V_T0}")
        A(f"v_add_u32 v{V_ADMA+n}, {8*n*rowstride - 1024*n}, v{V_T3}")
    A(f"v_and_b32 v{V_T0}, 15, v{V_L}")
    A(f"v_lshrrev_b32 v{V_T1}, 4, v{V_L}")
    A(f"v_lshrrev_b32 v{V_T2}, 1, v{V_T0}")
    A(f"v_xor_b32 v{V_T2}, v{V_T2}, v{V_T1}")
    A(f"v_lshlrev_b32 v{V_T0}, 7, v{V_T0}")
    A(f"s_mul_i32 s{S_T}, s{S_WR}, {nI*2048}")
    A(f"v_add_u32 v{V_T0}, s{S_T}, v{V_T0}")
    for u in range(2):
        A(f"v_xor_b32 v{V_T3}, {4*u}, v{V_T2}")
        A(f"v_lshlrev_b32 v{V_T3}, 4, v{V_T3}")
        A(f"v_add_u32 v{V_RAP+u}, v{V_T3}, v{V_T0}")

def setup_w(A, wstride, add_wavecol):
    A(f"v_lshrrev_b32 v{V_T0}, 3, v{V_L}")
    A(f"v_lshrrev_b32 v{V_T1}, 2, v{V_T0}\nv_lshlrev_b32 v{V_T1}, 3, v{V_T1}")
    A(f"v_and_b32 v{V_T0}, 3, v{V_T0}\nv_add_u32 v{V_T0}, v{V_T0}, v{V_T1}")
    A(f"s_mov_b32 s{S_T}, {wstride}\nv_mul_lo_u32 v{V_T0}, v{V_T0}, s{S_T}")
    A(f"v_and_b32 v{V_T1}, 7, v{V_L}\nv_lshrrev_b32 v{V_T1}, 1, v{V_T1}")
    A(f"v_lshrrev_b32 v{V_T2}, 4, v{V_L}\nv_xor_b32 v{V_T1}, v{V_T1}, v{V_T2}")
    A(f"v_lshlrev_b32 v{V_T1}, 5, v{V_T1}")
    A(f"v_and_b32 v{V_T2}, 1, v{V_L}\nv_lshlrev_b32 v{V_T2}, 4, v{V_T2}")
    A(f"v_add3_u32 v{V_T0}, v{V_T0}, v{V_T1}, v{V_T2}")
    if add_wavecol: A(f"s_lshl_b32 s{S_T}, s{S_W}, 7\nv_add_u32 v{V_T0}, s{S_T}, v{V_T0}")
    for n in range(4):
        A(f"v_add_u32 v{V_WDMA+n}, {(16*(n>>1)+4*(n&1))*wstride - 1024*n}, v{V_T0}")
    A(f"v_and_b32 v{V_T0}, 15, v{V_L}\nv_lshrrev_b32 v{V_T0}, 2, v{V_T0}")
    A(f"v_lshrrev_b32 v{V_T1}, 4, v{V_L}")
    A(f"v_and_b32 v{V_T2}, 1, v{V_T1}")
    A(f"v_lshrrev_b32 v{V_T1}, 1, v{V_T1}\nv_lshlrev_b32 v{V_T1}, 4, v{V_T1}")
    A(f"v_lshl_add_u32 v{V_T1}, v{V_T2}, 2, v{V_T1}\nv_add_u32 v{V_T1}, v{V_T1}, v{V_T0}")
    A(f"v_lshlrev_b32 v{V_T1}, 7, v{V_T1}")
    A(f"v_lshrrev_b32 v{V_T0}, 1, v{V_T0}\nv_lshl_add_u32 v{V_T0}, v{V_T2}, 1, v{V_T0}")
    A(f"v_and_b32 v{V_T2}, 3, v{V_L}\nv_lshl_add_u32 v{V_T1}, v{V_T2}, 3, v{V_T1}")
    A(f"s_lshl_b32 s{S_T}, s{S_WC}, 13\nv_add_u32 v{V_T1}, s{S_T}, v{V_T1}")
    for jq in range(4):
        A(f"v_xor_b32 v{V_T2}, {jq}, v{V_T0}\nv_lshl_add_u32 v{V_RW+jq}, v{V_T2}, 5, v{V_T1}")

def gen_k1(A, timing=False):
    name = "k1_proj_kernel"
    kernel_head(A, name)
    ST = Stamps(timing)
    A("s_cmp_ge_u32 s2, 256\ns_cbranch_scc1 K1_end")
    ST.stamp(A); ST.cyc(A)
    A("s_load_dwordx8 s[40:47], s[0:1], 8")
    A("s_load_dwordx2 s[48:49], s[0:1], 96")
    A(f"v_and_b32 v{V_L}, 63, v0\nv_lshrrev_b32 v{V_T0}, 6, v0")
    A(f"s_nop 0\nv_readfirstlane_b32 s{S_W}, v{V_T0}")
    A("s_and_b32 s3, s2, 7\ns_lshr_b32 s4, s2, 3\ns_and_b32 s5, s4, 3\ns_lshr_b32 s6, s4, 2")
    A("s_and_b32 s7, s5, 1\ns_lshl_b32 s31, s3, 1\ns_add_u32 s7, s7, s31")
    A(f"s_lshr_b32 s{S_WR}, s{S_W}, 1\ns_and_b32 s{S_WC}, s{S_W}, 1")
    A(f"s_lshl_b32 s{S_M0W}, s{S_W}, 12")
    setup_w(A, 8192, True)
    setup_addr(A, 2048, 64, 8)
    A(f"s_lshl_b32 s{S_M0A}, s{S_W}, 13\ns_add_u32 s{S_M0A}, s{S_M0A}, {LDS_A}")
    A("s_waitcnt lgkmcnt(0)")
    A("s_lshl_b32 s31, s6, 19")
    A(f"s_add_u32 s{S_A}, s40, s31\ns_addc_u32 s{S_A+1}, s41, 0\ns_sub_u32 s{S_A+2}, 0x400000, s31\ns_mov_b32 s{S_A+3}, 0x20000")
    A("s_lshr_b32 s32, s5, 1")
    A("s_cmp_eq_u32 s32, 0\ns_cselect_b32 s36, s44, s46\ns_cselect_b32 s37, s45, s47")
    A("s_lshl_b32 s31, s7, 9")
    A(f"s_add_u32 s{S_B}, s36, s31\ns_addc_u32 s{S_B+1}, s37, 0\ns_sub_u32 s{S_B+2}, 0x800000, s31\ns_mov_b32 s{S_B+3}, 0x20000")
    A(f"s_mul_i32 s31, s32, {VF-KF}\ns_lshl_b32 s33, s7, 20\ns_add_u32 s31, s31, s33\ns_add_u32 s31, s31, {KF}")
    A(f"s_add_u32 s{S_O}, s48, s31\ns_addc_u32 s{S_O+1}, s49, 0\ns_mov_b32 s{S_O+2}, 0x100000\ns_mov_b32 s{S_O+3}, 0x20000")
    A("s_cmp_eq_u32 s32, 0\ns_cbranch_scc0 K1_V")
    n0 = ST.n
    gemm_phase(A, "K1K", 8, 'K', 2048, 8, 6, ST)
    ST.stamp(A)
    A(f"v_lshlrev_b32 v{V_ST}, 4, v{V_L}")
    A(f"s_lshl_b32 s{S_T}, s6, 17\ns_lshl_b32 s31, s{S_WR}, 16\ns_add_u32 s{S_T}, s{S_T}, s31\ns_lshl_b32 s31, s{S_WC}, 12\ns_add_u32 s{S_T}, s{S_T}, s31")
    epilogue(A, 8, 'K')
    A("s_branch K1_Q")
    ST.n = n0
    A("K1_V:")
    gemm_phase(A, "K1V", 8, 'V', 2048, 8, 6, ST)
    ST.stamp(A)
    A(f"v_lshlrev_b32 v{V_ST}, 4, v{V_L}")
    A(f"s_lshl_b32 s{S_T}, s6, 17\ns_lshl_b32 s31, s{S_WR}, 16\ns_add_u32 s{S_T}, s{S_T}, s31\ns_lshl_b32 s31, s{S_WC}, 13\ns_add_u32 s{S_T}, s{S_T}, s31")
    epilogue(A, 8, 'V')
    A("K1_Q:")
    ST.stamp(A)
    A("s_waitcnt vmcnt(0)\ns_barrier")
    ST.stamp(A)
    A("s_and_b32 s5, s4, 1\ns_lshl_b32 s7, s3, 1\ns_add_u32 s7, s7, s5")
    A("s_lshr_b32 s6, s4, 1")
    setup_addr(A, 896, 32, 4)
    A(f"s_lshl_b32 s{S_M0A}, s{S_W}, 12\ns_add_u32 s{S_M0A}, s{S_M0A}, {LDS_A}")
    A(f"s_mul_i32 s31, s6, {128*896}")
    A(f"s_add_u32 s{S_A}, s48, s31\ns_addc_u32 s{S_A+1}, s49, 0\ns_sub_u32 s{S_A+2}, {2048*896}, s31")
    A("s_lshl_b32 s31, s7, 9")
    A(f"s_add_u32 s{S_B}, s42, s31\ns_addc_u32 s{S_B+1}, s43, 0\ns_sub_u32 s{S_B+2}, {448*8192}, s31")
    A(f"s_lshl_b32 s33, s7, 20\ns_add_u32 s31, s33, {QF}")
    A(f"s_add_u32 s{S_O}, s48, s31\ns_addc_u32 s{S_O+1}, s49, 0")
    gemm_phase(A, "K1Q", 4, 'K', 896, 4, 5, ST)
    ST.stamp(A)
    A(f"v_lshlrev_b32 v{V_ST}, 4, v{V_L}")
    A(f"s_lshl_b32 s{S_T}, s6, 16\ns_lshl_b32 s31, s{S_WR}, 15\ns_add_u32 s{S_T}, s{S_T}, s31\ns_lshl_b32 s31, s{S_WC}, 12\ns_add_u32 s{S_T}, s{S_T}, s31")
    c = float_hex(1.4426950408889634 / 16.0)
    A(f"s_mov_b32 s34, {c}\ns_mov_b32 s35, {c}")
    epilogue(A, 4, 'K', scale=True)
    ST.stamp(A)
    if timing: A("s_waitcnt vmcnt(0)")
    ST.stamp(A); ST.cyc(A)
    ST.flush(A, "s48", "s49", TIM)
    A("K1_end:\ns_endpgm")
    return name


def gen_k4(A, timing=False):
    name = "k4_gateup_kernel"
    kernel_head(A, name)
    ST = Stamps(timing)
    A("s_cmp_ge_u32 s2, 224\ns_cbranch_scc1 K4_end")
    ST.stamp(A); ST.cyc(A)
    A("s_load_dwordx4 s[40:43], s[0:1], 56")
    A("s_load_dwordx2 s[48:49], s[0:1], 96")
    A(f"v_and_b32 v{V_L}, 63, v0\nv_lshrrev_b32 v{V_T0}, 6, v0")
    A(f"s_nop 0\nv_readfirstlane_b32 s{S_W}, v{V_T0}")
    A("s_and_b32 s3, s2, 7\ns_lshr_b32 s4, s2, 3\ns_and_b32 s5, s4, 1\ns_lshl_b32 s6, s3, 1\ns_add_u32 s6, s6, s5\ns_lshr_b32 s7, s4, 1")
    A(f"s_lshr_b32 s{S_WR}, s{S_W}, 1\ns_and_b32 s{S_WC}, s{S_W}, 1")
    A(f"s_lshl_b32 s{S_M0W}, s{S_W}, 12")
    setup_w(A, 3584, False)
    setup_addr(A, 896, 32, 4)
    A(f"s_lshl_b32 s{S_M0A}, s{S_W}, 12\ns_add_u32 s{S_M0A}, s{S_M0A}, {LDS_A}")
    A("s_waitcnt lgkmcnt(0)")
    A(f"s_mul_i32 s31, s6, {128*896}\ns_add_u32 s33, s31, {HN}")
    A(f"s_add_u32 s{S_A}, s48, s33\ns_addc_u32 s{S_A+1}, s49, 0\ns_sub_u32 s{S_A+2}, {2048*896}, s31\ns_mov_b32 s{S_A+3}, 0x20000")
    A(f"s_cmp_eq_u32 s{S_WC}, 0\ns_cselect_b32 s36, s40, s42\ns_cselect_b32 s37, s41, s43")
    A(f"s_lshl_b32 s31, s7, 8\ns_lshl_b32 s33, s{S_WR}, 7\ns_add_u32 s31, s31, s33")
    A(f"s_add_u32 s{S_B}, s36, s31\ns_addc_u32 s{S_B+1}, s37, 0\ns_sub_u32 s{S_B+2}, {448*3584}, s31\ns_mov_b32 s{S_B+3}, 0x20000")
    srd(A, S_O, "s48", "s49", GB, 128 * 56 * 1024)
    gemm_phase(A, "K4", 4, 'K', 896, 4, 5, ST, wstride=3584)
    ST.stamp(A)
    A(f"v_lshlrev_b32 v{V_ST}, 4, v{V_L}")
    A(f"s_lshl_b32 s{S_T}, s6, 3\ns_lshl_b32 s31, s{S_WR}, 2\ns_add_u32 s{S_T}, s{S_T}, s31\ns_mul_i32 s{S_T}, s{S_T}, {56*1024}")
    A(f"s_lshl_b32 s31, s7, 12\ns_add_u32 s{S_T}, s{S_T}, s31\ns_lshl_b32 s31, s{S_WC}, 11\ns_add_u32 s{S_T}, s{S_T}, s31")
    A("s_nop 7")
    T = 192; cnt = 0
    for i in range(4):
        for sp in range(2):
            t = T + (cnt % 2) * 24
            for hh in range(2):
                for r in range(4):
                    A(f"v_accvgpr_read_b32 v{t+4*hh+r}, a{(i*8+2*sp+hh)*4+r}")
                    A(f"v_accvgpr_read_b32 v{t+8+4*hh+r}, a{(i*8+4+2*sp+hh)*4+r}")
            for r in range(8): A(f"v_max_f32 v{t+r}, 0, v{t+r}")
            for r in range(8): A(f"v_mul_f32 v{t+r}, v{t+r}, v{t+8+r}")
            for r in range(4): A(f"v_cvt_pk_bf16_f32 v{t+16+r}, v{t+2*r}, v{t+2*r+1}")
            A(f"buffer_store_dwordx4 v[{t+16}:{t+19}], v{V_ST}, s[{S_O}:{S_O+3}], s{S_T} offen offset:{sp*1024}")
            cnt += 1
        A(f"s_add_u32 s{S_T}, s{S_T}, {56*1024}")
    ST.stamp(A)
    if timing: A("s_waitcnt vmcnt(0)")
    ST.stamp(A); ST.cyc(A)
    ST.flush(A, "s48", "s49", TIM + 3 * 65536)
    A("K4_end:\ns_endpgm")
    return name
```

```python
from fw import *
from layout import *
from k0 import float_hex

V_L16, V_RDA, V_RDB, V_DMA, V_E, V_T0, V_T1, V_T2, V_T3 = 1, 2, 3, 4, 5, 6, 7, 8, 9
SB = [16, 48]
PB = 80
NEGM = 96
LS = 104
MX = 108
FRG = 112
NR = 16; DLOOK = 10
TMP = 176
OA = 0
QA = 128
S_W = 20; S_H = 21; S_JQ = 22; S_T0 = 23; S_N = 24
S_KOFF = 25; S_VOFF = 26
S_SLOTD = 27
S_SLOTR = 28
S_M0B = 29
S_T = 30; S_T2 = 31
S_CNT = 32; S_ROLE = 33; S_PAIR = 34; S_ONES = 35; S_THR = 36
S_KV = 8; S_Q = 12; S_O = 16
S_RET = 90
NSLOT = 5; SLOT = 32768

def S(set_, kf, qf): return SB[set_] + (kf * 2 + qf) * 4
def P(ks, qf): return PB + (ks * 2 + qf) * 4
def O(df, qf): return OA + (df * 2 + qf) * 4
def Q(qf, ds): return QA + (qf * 8 + ds) * 4
def frag(f): return FRG + (f % NR) * 4

def dma_item(kind):
    off = S_KOFF if kind == 'K' else S_VOFF
    G = []
    G.append([f"s_add_u32 m0, s{S_M0B}, s{S_SLOTD}", f"s_add_u32 s{S_T2}, s{off}, 4096",
              f"buffer_load_dwordx4 v{V_DMA}, s[{S_KV}:{S_KV+3}], s{off} offen lds"])
    for n in (1, 2, 3): G.append([f"buffer_load_dwordx4 v{V_DMA}, s[{S_KV}:{S_KV+3}], s{off} offen offset:{n*1024} lds"])
    G[-1].append("s_add_u32 m0, m0, 4096")
    G.append([f"s_add_u32 s{off}, s{off}, {SLOT}", f"buffer_load_dwordx4 v{V_DMA}, s[{S_KV}:{S_KV+3}], s{S_T2} offen lds"])
    for n in (1, 2, 3): G.append([f"buffer_load_dwordx4 v{V_DMA}, s[{S_KV}:{S_KV+3}], s{S_T2} offen offset:{n*1024} lds"])
    G[-1] += [f"s_add_u32 s{S_SLOTD}, s{S_SLOTD}, {SLOT}", f"s_cmp_eq_u32 s{S_SLOTD}, {NSLOT*SLOT}", f"s_cselect_b32 s{S_SLOTD}, 0, s{S_SLOTD}"]
    return G

def adv_read(vreg):
    return [f"v_add_u32 v{vreg}, s{S_SLOTR}, v{V_L16}", f"s_add_u32 s{S_SLOTR}, s{S_SLOTR}, {SLOT}",
            f"s_cmp_eq_u32 s{S_SLOTR}, {NSLOT*SLOT}", f"s_cselect_b32 s{S_SLOTR}, 0, s{S_SLOTR}"]

def rd(f, vbase, fi):
    return f"ds_read_b128 v[{frag(f)}:{frag(f)+3}], v{vbase} offset:{fi*1024}"

def phase(A, mf, vcur, vnxt, dma_kind, valu, valu_range=(0, 59), prefetch_next=True, first_reads_done=True):
    main = []
    for f in range(32):
        for j in range(2): main.append(mf(f, j))
    fills = {}
    pre = {}
    for f in range(32):
        if f % 2 == 0: pre[2 * f] = [f"s_waitcnt lgkmcnt({DLOOK-2})"]
        nf = f + DLOOK
        if nf < 32: fills.setdefault(2 * f + 1, []).append(rd(nf, vcur, nf))
        elif prefetch_next: fills.setdefault(2 * f + 1, []).append(rd(nf, vnxt, nf - 32))
    if not prefetch_next:
        for f in range(32):
            if f % 2 == 0:
                last_issued = min(f - 1 + DLOOK, 31)
                pre[2 * f] = [f"s_waitcnt lgkmcnt({max(0, last_issued - (f + 1))})"]
    pre[60] = [pre[60][0].replace("s_waitcnt", "s_waitcnt vmcnt(16)"), "s_barrier"]
    if dma_kind:
        G = dma_item(dma_kind)
        for k, g in enumerate(G): fills.setdefault(2 + 7 * k, []).extend(g)
    lastuse = 2 * (31 - DLOOK) + 1
    adv = adv_read(vcur)
    fills.setdefault(lastuse + 1, []).extend(adv)
    if valu:
        a, b = valu_range
        n = len(valu)
        for k, it in enumerate(valu):
            idx = a + (k * (b - a + 1)) // n
            fills.setdefault(idx, []).extend(it if isinstance(it, list) else [it])
    for i, m in enumerate(main):
        for s in pre.get(i, []): A(s)
        A(m)
        for s in fills.get(i, []): A(s)

def qk_mf(dst_set, czero=False):
    def mf(f, qf):
        kf, ds = f // 8, f % 8
        d = vr(S(dst_set, kf, qf), 4)
        c = d if ds > 0 else ("0" if czero else vr(NEGM + qf * 4, 4))
        return f"v_mfma_f32_16x16x32_bf16 {d}, {vr(frag(f),4)}, {ar(Q(qf,ds),4)}, {c}"
    return mf
def pv_mf(f, qf):
    ks, df = f // 16, f % 16
    o = ar(O(df, qf), 4)
    return f"v_mfma_f32_16x16x32_bf16 {o}, {vr(frag(f),4)}, {vr(P(ks,qf),4)}, {o}"

def p_ops(set_, ks, qf):
    L = []
    r0, r1 = S(set_, 2 * ks, qf), S(set_, 2 * ks + 1, qf)
    regs = [r0 + i for i in range(4)] + [r1 + i for i in range(4)]
    for r in regs: L.append(f"v_exp_f32 v{r}, v{r}")
    for i in range(4): L.append(f"v_cvt_pk_bf16_f32 v{P(ks,qf)+i}, v{regs[2*i]}, v{regs[2*i+1]}")
    for i in range(4): L.append(f"v_dot2_f32_bf16 v{LS+2*qf+(i&1)}, v{P(ks,qf)+i}, s{S_ONES}, v{LS+2*qf+(i&1)}")
    return L

def max_ops(set_):
    L = []
    for qf in range(2):
        regs = [S(set_, kf, qf) + i for kf in range(4) for i in range(4)]
        L.append(f"v_max3_f32 v{MX+qf}, v{regs[0]}, v{regs[1]}, v{regs[2]}")
        for i in range(3, 15, 2): L.append(f"v_max3_f32 v{MX+qf}, v{MX+qf}, v{regs[i]}, v{regs[i+1]}")
        L.append(f"v_max_f32 v{MX+qf}, v{MX+qf}, v{regs[15]}")
    return L

def mask_ops(set_, dd):
    L = [f"s_lshl_b32 s{S_T}, s{S_W}, 5", f"s_sub_i32 s{S_T}, s{S_T}, {64*dd}", f"v_sub_u32 v{V_T0}, s{S_T}, v{V_E}",
         f"v_mov_b32 v{V_T1}, 0xff800000"]
    items = [(kf, qf, r) for kf in range(4) for qf in range(2) for r in range(4)]
    for b in range(0, 32, 4):
        for k in range(4):
            kf, qf, r = items[b + k]
            L.append(f"v_cmp_le_i32 s[{82+2*k}:{83+2*k}], {16*kf + r - 16*qf}, v{V_T0}")
        for k in range(4):
            kf, qf, r = items[b + k]
            L.append(f"v_cndmask_b32 v{S(set_,kf,qf)+r}, v{V_T1}, v{S(set_,kf,qf)+r}, s[{82+2*k}:{83+2*k}]")
    return L

def xlane_max(A, regs, tmps):
    for sw in ("v_permlane16_swap_b32", "v_permlane32_swap_b32"):
        for x, y in zip(regs, tmps): A(f"v_mov_b32 v{y}, v{x}")
        A("s_nop 1")
        for x, y in zip(regs, tmps): A(f"{sw} v{x}, v{y}")
        A("s_nop 1")
        for x, y in zip(regs, tmps): A(f"v_max_f32 v{x}, v{x}, v{y}")
def xlane_sum(A, regs, tmps):
    for sw in ("v_permlane16_swap_b32", "v_permlane32_swap_b32"):
        for x, y in zip(regs, tmps): A(f"v_mov_b32 v{y}, v{x}")
        A("s_nop 1")
        for x, y in zip(regs, tmps): A(f"{sw} v{x}, v{y}")
        A("s_nop 1")
        for x, y in zip(regs, tmps): A(f"v_add_f32 v{x}, v{x}, v{y}")

def check_ops(set_):
    return [f"v_max_f32 v{V_T2}, v{MX}, v{MX+1}", "s_nop 0", f"v_cmp_lt_f32 vcc, s{S_THR}, v{V_T2}"]

def slow_sub(A, set_, init):
    A(f"K2_slow{set_}{'i' if init else ''}:")
    A("s_nop 15")
    xlane_max(A, [MX, MX + 1], [V_T0, V_T1])
    if not init:
        for qf in range(2): A(f"v_max_f32 v{MX+qf}, 0, v{MX+qf}")
    for qf in range(2):
        for kf in range(4):
            for r in range(4): A(f"v_sub_f32 v{S(set_,kf,qf)+r}, v{S(set_,kf,qf)+r}, v{MX+qf}")
        for r in range(4): A(f"v_sub_f32 v{NEGM+4*qf+r}, v{NEGM+4*qf+r}, v{MX+qf}")
    if not init:
        for qf in range(2): A(f"v_sub_f32 v{V_T0+qf}, 0, v{MX+qf}\nv_exp_f32 v{V_T0+qf}, v{V_T0+qf}")
        A("s_nop 0")
        for qf in range(2):
            for k in range(2): A(f"v_mul_f32 v{LS+2*qf+k}, v{LS+2*qf+k}, v{V_T0+qf}")
        for df in range(16):
            for qf in range(2):
                t = TMP + ((df * 2 + qf) % 4) * 4
                for r in range(4): A(f"v_accvgpr_read_b32 v{t+r}, a{O(df,qf)+r}")
                for r in range(4): A(f"v_mul_f32 v{t+r}, v{t+r}, v{V_T0+qf}")
                for r in range(4): A(f"v_accvgpr_write_b32 a{O(df,qf)+r}, v{t+r}")
    A("s_nop 1")
    A(f"s_setpc_b64 s[{S_RET}:{S_RET+1}]")

def call_if_vcc(A, set_, tag):
    A(f"s_cbranch_vccz {tag}")
    A(f"s_call_b64 s[{S_RET}:{S_RET+1}], K2_slow{set_}")
    A(f"{tag}:")

def IT(A, cur, maskdd, tag):
    nxt = cur ^ 1
    v1 = p_ops(cur, 0, 0) + p_ops(cur, 0, 1) + p_ops(cur, 1, 0)
    items = [((k * 59) // len(v1), it) for k, it in enumerate(v1)]
    phase_custom(A, qk_mf(nxt), V_RDA, V_RDB, 'K', items)
    v2a = p_ops(cur, 1, 1)
    v2b = (mask_ops(nxt, maskdd) if maskdd is not None else []) + max_ops(nxt) + check_ops(nxt)
    phase2(A, v2a, v2b)
    call_if_vcc(A, nxt, tag)

def phase2(A, v2a, v2b, prefetch_next=True, dma='V'):
    items = []
    na = len(v2a)
    for k, it in enumerate(v2a): items.append((0 + (k * 21) // max(na, 1), it))
    nb = len(v2b)
    for k, it in enumerate(v2b): items.append((21 + (k * 38) // max(nb, 1), it))
    phase_custom(A, pv_mf, V_RDB, V_RDA, dma, items, prefetch_next)

def phase_custom(A, mf, vcur, vnxt, dma_kind, items, prefetch_next=True):
    main = []
    for f in range(32):
        for j in range(2): main.append(mf(f, j))
    fills = {}; pre = {}
    for f in range(32):
        if f % 2 == 0:
            last_issued = (f - 1 + DLOOK) if prefetch_next else min(f - 1 + DLOOK, 31)
            pre[2 * f] = [f"s_waitcnt lgkmcnt({max(0, last_issued - (f + 1))})"]
        nf = f + DLOOK
        if nf < 32: fills.setdefault(2 * f + 1, []).append(rd(nf, vcur, nf))
        elif prefetch_next: fills.setdefault(2 * f + 1, []).append(rd(nf, vnxt, nf - 32))
    pre[60] = [pre[60][0].replace("s_waitcnt", "s_waitcnt vmcnt(16)"), "s_barrier"]
    if dma_kind:
        G = dma_item(dma_kind)
        for k, g in enumerate(G): fills.setdefault(2 + 7 * k, []).extend(g)
    lastuse = 2 * (31 - DLOOK) + 1
    fills.setdefault(lastuse + 1, []).extend(adv_read(vcur))
    for idx, it in items: fills.setdefault(idx, []).append(it)
    for i, m in enumerate(main):
        for s in pre.get(i, []): A(s)
        A(m)
        for s in fills.get(i, []): A(s)

def PRO(A, set_, tag):
    phase_custom(A, qk_mf(set_, czero=True), V_RDB, V_RDA, 'V', [])
    A("s_nop 7")

def first_reads(A, vbase):
    for f in range(DLOOK): A(rd(f, vbase, f))

def seg_start(A):
    A("s_waitcnt vmcnt(0) lgkmcnt(0)\ns_barrier")
    A(f"s_lshl_b32 s{S_KOFF}, s{S_T0}, 15")
    A(f"s_add_u32 s{S_VOFF}, s{S_KOFF}, {VF-KF}")
    A(f"s_mov_b32 s{S_SLOTD}, 0\ns_mov_b32 s{S_SLOTR}, 0")
    for kind in ('K', 'K', 'V', 'K'):
        G = dma_item(kind)
        for gi, g in enumerate(G):
            for s in g:
                A(s)
                if s.startswith("s_add_u32 m0"): pass
            if gi == 0 or gi == 3: pass
        if kind == 'K' and False: pass
    A(f"s_lshl_b32 s{S_T}, s{S_JQ}, 16\ns_lshl_b32 s{S_T2}, s{S_W}, 14\ns_add_u32 s{S_T}, s{S_T}, s{S_T2}")
    for i in range(16):
        A(f"buffer_load_dwordx4 a[{QA+4*i}:{QA+4*i+3}], v{V_L16}, s[{S_Q}:{S_Q+3}], s{S_T} offen offset:{(i&3)*1024}")
        if i % 4 == 3: A(f"s_add_u32 s{S_T}, s{S_T}, 4096")
    for i in range(128): A(f"v_accvgpr_write_b32 a{OA+i}, 0")
    for i in range(4): A(f"v_mov_b32 v{LS+i}, 0")
    for i in range(8): A(f"v_mov_b32 v{NEGM+i}, 0")
    for s in adv_read(V_RDB): A(s)
    for s in adv_read(V_RDA): A(s)
    A("s_waitcnt vmcnt(0)\ns_barrier")
    first_reads(A, V_RDB)

def finalize(A, combine):
    A("s_nop 15")
    for qf in range(2): A(f"v_add_f32 v{LS+2*qf}, v{LS+2*qf}, v{LS+2*qf+1}")
    cA = [V_T0, V_T1]; cB = [V_T2, V_T3]
    if combine:
        st = TMP
        A(f"v_min_f32 v10, v{NEGM}, v{st}\nv_min_f32 v11, v{NEGM+4}, v{st+1}")
        for qf in range(2):
            A(f"v_sub_f32 v{cA[qf]}, v{10+qf}, v{NEGM+4*qf}\nv_sub_f32 v{cB[qf]}, v{10+qf}, v{st+qf}")
        for qf in range(2):
            A(f"v_exp_f32 v{cA[qf]}, v{cA[qf]}\nv_exp_f32 v{cB[qf]}, v{cB[qf]}")
        A("s_nop 0")
        for qf in range(2):
            A(f"v_mul_f32 v{LS+2*qf}, v{LS+2*qf}, v{cA[qf]}\nv_fmac_f32 v{LS+2*qf}, v{st+2+qf}, v{cB[qf]}")
    xlane_sum(A, [LS, LS + 2], [LS + 1, LS + 3])
    for qf in range(2): A(f"v_rcp_f32 v{LS+2*qf}, v{LS+2*qf}")
    A("s_nop 0")
    if combine:
        for qf in range(2):
            A(f"v_mul_f32 v{cA[qf]}, v{cA[qf]}, v{LS+2*qf}\nv_mul_f32 v{cB[qf]}, v{cB[qf]}, v{LS+2*qf}")
    else:
        for qf in range(2): A(f"v_mov_b32 v{cA[qf]}, v{LS+2*qf}")
    A(f"s_lshl_b32 s{S_T}, s{S_JQ}, 3\ns_lshl_b32 s{S_T2}, s{S_W}, 1\ns_add_u32 s{S_T}, s{S_T}, s{S_T2}\ns_lshl_b32 s{S_T}, s{S_T}, 17")
    A(f"s_lshl_b32 s{S_T2}, s{S_H}, 13\ns_add_u32 s{S_T}, s{S_T}, s{S_T2}")
    PB_ = 16
    cnt = 0
    for qf in range(2):
        if combine:
            for df in range(16):
                idx = df * 2 + qf
                A(f"s_add_u32 s40, s41, {idx*1024}")
                A(f"buffer_load_dwordx4 v[{PB_+4*df}:{PB_+4*df+3}], v{V_L16}, s[44:47], s40 offen sc1")
        for s in range(8):
            t = TMP + 8 + (cnt % 4) * 12
            for hh in range(2):
                for r in range(4): A(f"v_accvgpr_read_b32 v{t+4*hh+r}, a{O(2*s+hh,qf)+r}")
            for r in range(8): A(f"v_mul_f32 v{t+r}, v{t+r}, v{cA[qf]}")
            if combine:
                A(f"s_waitcnt vmcnt({14-s})")
                for hh in range(2):
                    for r in range(4): A(f"v_fmac_f32 v{t+4*hh+r}, v{PB_+4*(2*s+hh)+r}, v{cB[qf]}")
            for r in range(4): A(f"v_cvt_pk_bf16_f32 v{t+8+r}, v{t+2*r}, v{t+2*r+1}")
            A(f"buffer_store_dwordx4 v[{t+8}:{t+11}], v{V_L16}, s[{S_O}:{S_O+3}], s{S_T} offen offset:{(s&3)*1024}")
            if s == 3: A(f"s_add_u32 s{S_T}, s{S_T}, 4096")
            cnt += 1
        A(f"s_add_u32 s{S_T}, s{S_T}, {131072-4096}")
        if combine and qf == 0: A("s_waitcnt vmcnt(0)")

def gen_k2(A, timing=False):
    name = "k2_attn_kernel"
    kernel_head(A, name)
    ST = Stamps(timing)
    A("s_cmp_ge_u32 s2, 256\ns_cbranch_scc1 K2_end")
    ST.stamp(A); ST.cyc(A)
    A("s_load_dwordx4 s[48:51], s[0:1], 88")
    A(f"v_and_b32 v{V_T0}, 63, v0\nv_lshlrev_b32 v{V_L16}, 4, v{V_T0}\nv_lshrrev_b32 v{V_T1}, 6, v0")
    A(f"s_nop 0\nv_readfirstlane_b32 s{S_W}, v{V_T1}")
    A(f"v_lshrrev_b32 v{V_T1}, 4, v{V_T0}\nv_lshlrev_b32 v{V_T1}, 2, v{V_T1}\nv_and_b32 v{V_T2}, 15, v{V_T0}\nv_sub_u32 v{V_E}, v{V_T1}, v{V_T2}")
    A(f"s_lshl_b32 s{S_M0B}, s{S_W}, 13\nv_add_u32 v{V_DMA}, s{S_M0B}, v{V_L16}")
    A(f"s_and_b32 s3, s2, 7\ns_lshr_b32 s4, s2, 3\ns_and_b32 s5, s4, 1\ns_lshl_b32 s{S_H}, s3, 1\ns_add_u32 s{S_H}, s{S_H}, s5")
    A(f"s_lshr_b32 s{S_ROLE}, s4, 1")
    A(f"s_mov_b32 s{S_ONES}, 0x3f803f80\ns_mov_b32 s{S_THR}, {float_hex(16.0)}")
    A("s_waitcnt lgkmcnt(0)")
    A(f"s_lshl_b32 s6, s{S_H}, 20")
    A(f"s_add_u32 s7, s6, {KF}\ns_add_u32 s{S_KV}, s50, s7\ns_addc_u32 s{S_KV+1}, s51, 0\ns_mov_b32 s{S_KV+2}, {VF-KF+MB}\ns_mov_b32 s{S_KV+3}, 0x20000")
    A(f"s_add_u32 s7, s6, {QF}\ns_add_u32 s{S_Q}, s50, s7\ns_addc_u32 s{S_Q+1}, s51, 0\ns_mov_b32 s{S_Q+2}, {MB}\ns_mov_b32 s{S_Q+3}, 0x20000")
    srd(A, S_O, "s50", "s51", CTX, 16 * MB)
    A(f"s_sub_u32 s7, 15, s{S_ROLE}\ns_cmp_ge_u32 s{S_ROLE}, 8\ns_cselect_b32 s{S_JQ}, s{S_ROLE}, s7")
    A(f"s_lshl_b32 s{S_PAIR}, s{S_H}, 3\ns_add_u32 s{S_PAIR}, s{S_PAIR}, s{S_JQ}\ns_sub_u32 s{S_PAIR}, s{S_PAIR}, 8")
    A(f"s_lshl_b32 s7, s{S_PAIR}, 17\ns_lshl_b32 s6, s{S_W}, 15\ns_add_u32 s7, s7, s6\ns_add_u32 s7, s7, {PART}")
    A(f"s_add_u32 s44, s50, s7\ns_addc_u32 s45, s51, 0\ns_mov_b32 s46, 32768\ns_mov_b32 s47, 0x20000")
    A(f"s_lshl_b32 s7, s{S_PAIR}, 12\ns_lshl_b32 s6, s{S_W}, 10\ns_add_u32 s7, s7, s6\ns_add_u32 s7, s7, {PST}")
    A(f"s_add_u32 s52, s50, s7\ns_addc_u32 s53, s51, 0\ns_mov_b32 s54, 1024\ns_mov_b32 s55, 0x20000")
    A(f"s_mov_b32 s56, s48\ns_mov_b32 s57, s49\ns_mov_b32 s58, 256\ns_mov_b32 s59, 0x20000")
    A(f"s_lshl_b32 s5, s{S_JQ}, 1\ns_sub_u32 s5, s5, 15")
    A(f"s_cmp_ge_u32 s{S_ROLE}, 8\ns_cbranch_scc1 K2_A")
    A(f"s_mov_b32 s{S_T0}, 0\ns_mov_b32 s{S_N}, s5\ns_mov_b32 s37, 0")
    A("s_branch K2_seg")
    A("K2_A:")
    A(f"s_mov_b32 s{S_T0}, s5\ns_mov_b32 s{S_N}, 15\ns_mov_b32 s37, 2")
    A("K2_seg:")
    ST.stamp(A)
    seg_start(A)
    ST.stamp(A)
    A(f"s_bitcmp1_b32 s{S_N}, 0\ns_cbranch_scc0 K2_pro1")
    PRO(A, 0, "p0")
    for s in max_ops(0): A(s)
    A(f"s_call_b64 s[{S_RET}:{S_RET+1}], K2_slow0i")
    A(f"s_sub_u32 s{S_CNT}, s{S_N}, 1\ns_lshr_b32 s{S_CNT}, s{S_CNT}, 1")
    A(f"s_cmp_eq_u32 s{S_CNT}, 0\ns_cbranch_scc1 K2_loopdone")
    A("s_branch K2_it0")
    A("K2_pro1:")
    PRO(A, 1, "p1")
    A(f"s_cmp_lg_u32 s{S_N}, 0\ns_cbranch_scc1 K2_pro1_nomask")
    for s in mask_ops(1, 0): A(s)
    A("K2_pro1_nomask:")
    for s in max_ops(1): A(s)
    A(f"s_call_b64 s[{S_RET}:{S_RET+1}], K2_slow1i")
    A(f"s_cmp_eq_u32 s{S_N}, 0\ns_cbranch_scc1 K2_it1d1")
    A(f"s_lshr_b32 s{S_CNT}, s{S_N}, 1")
    A("s_branch K2_it1")
    A(".p2align 3")
    A("K2_it0:")
    IT(A, 0, None, "K2_r0")
    A("K2_it1:")
    IT(A, 1, None, "K2_r1")
    A(f"s_sub_u32 s{S_CNT}, s{S_CNT}, 1\ns_cmp_lg_u32 s{S_CNT}, 0\ns_cbranch_scc1 K2_it0")
    A("K2_loopdone:")
    A("s_cmp_eq_u32 s37, 0\ns_cbranch_scc1 K2_fin")
    IT(A, 0, 0, "K2_r2")
    A("K2_it1d1:")
    IT(A, 1, 1, "K2_r3")
    A("K2_fin:")
    A("s_waitcnt lgkmcnt(0)")
    for ks in range(2):
        for qf in range(2):
            for s in p_ops(0, ks, qf): A(s)
    A("s_waitcnt vmcnt(8)\ns_barrier")
    first_reads(A, V_RDB)
    phase_custom(A, pv_mf, V_RDB, V_RDA, None, [], prefetch_next=False)
    ST.stamp(A)
    A("s_cmp_eq_u32 s37, 0\ns_cbranch_scc0 K2_final")
    A("s_nop 15")
    for i in range(32):
        A(f"s_mov_b32 s40, {i*1024}")
        A(f"buffer_store_dwordx4 a[{OA+4*i}:{OA+4*i+3}], v{V_L16}, s[44:47], s40 offen sc1")
    A(f"v_mov_b32 v{TMP}, v{NEGM}\nv_mov_b32 v{TMP+1}, v{NEGM+4}\nv_add_f32 v{TMP+2}, v{LS}, v{LS+1}\nv_add_f32 v{TMP+3}, v{LS+2}, v{LS+3}")
    A(f"buffer_store_dwordx4 v[{TMP}:{TMP+3}], v{V_L16}, s[52:55], 0 offen sc1")
    A("s_waitcnt vmcnt(0)")
    A(f"s_lshl_b32 s40, s{S_PAIR}, 2\ns_add_u32 s40, s40, s{S_W}\ns_lshr_b32 s41, s40, 5\ns_lshl_b32 s41, s41, 2\ns_and_b32 s40, s40, 31\ns_lshl_b32 s40, 1, s40")
    A(f"v_mov_b32 v{V_T0}, s40\nv_mov_b32 v{V_T1}, s41")
    A(f"v_cmp_eq_u32 vcc, 0, v{V_L16}\ns_and_saveexec_b64 s[42:43], vcc")
    A(f"buffer_atomic_or v{V_T0}, v{V_T1}, s[56:59], 0 offen sc1")
    A("s_mov_b64 exec, s[42:43]")
    A(f"s_mov_b32 s{S_JQ}, s{S_ROLE}\ns_mov_b32 s{S_T0}, 0\ns_lshl_b32 s{S_N}, s{S_ROLE}, 1\ns_mov_b32 s37, 1")
    A("s_branch K2_seg")
    A("K2_final:")
    A("s_cmp_eq_u32 s37, 2\ns_cbranch_scc1 K2_comb")
    finalize(A, False)
    A("s_branch K2_done")
    A("K2_comb:")
    A(f"s_lshl_b32 s40, s{S_PAIR}, 2\ns_add_u32 s40, s40, s{S_W}\ns_lshr_b32 s41, s40, 5\ns_lshl_b32 s41, s41, 2\ns_and_b32 s40, s40, 31\ns_lshl_b32 s40, 1, s40")
    A(f"v_mov_b32 v{V_T1}, s41\ns_mov_b32 s42, 0")
    A("K2_spin:")
    A(f"buffer_load_dword v{V_T0}, v{V_T1}, s[56:59], 0 offen sc1\ns_waitcnt vmcnt(0)")
    A(f"v_readfirstlane_b32 s43, v{V_T0}\ns_nop 3\ns_and_b32 s43, s43, s40\ns_cbranch_scc1 K2_got")
    A("s_add_u32 s42, s42, 1\ns_cmp_lt_u32 s42, 0x100000\ns_cbranch_scc0 K2_got\ns_sleep 2\ns_branch K2_spin")
    A("K2_got:")
    A(f"buffer_load_dwordx4 v[{TMP}:{TMP+3}], v{V_L16}, s[52:55], 0 offen sc1\ns_waitcnt vmcnt(0)")
    A("s_mov_b32 s41, 0")
    finalize(A, True)
    A("K2_done:")
    ST.stamp(A)
    if timing: A("s_waitcnt vmcnt(0)")
    ST.stamp(A); ST.cyc(A)
    ST.flush(A, "s50", "s51", TIM + 65536)
    A("K2_end:\ns_endpgm")
    for set_ in (0, 1):
        slow_sub(A, set_, False)
        slow_sub(A, set_, True)
    return name
```

```python
from fw import *
from layout import *
from k0 import float_hex

V_L, V_L16, V_T0, V_T1, V_T2, V_T3 = 1, 2, 3, 4, 5, 6
V_WD = 8
V_BD = 12
V_RW = 16
V_OUT = 20
BS = 32
AS = 96
TT = 128
S_W = 20; S_KW = 21; S_KB = 22; S_IT = 23; S_NIT = 24; S_M0 = 25; S_T = 26; S_TB = 27; S_FB = 28
S_A = 8; S_B = 12; S_R = 16; S_O = 36
NS = 4; PD = 3

def gen_k35(A, name, which, timing=False, tim_off=0):
    NK = 128 if which == 'o' else 56
    P = name[:2].upper()
    kernel_head(A, name)
    ST = Stamps(timing)
    A(f"s_cmp_ge_u32 s2, 224\ns_cbranch_scc1 {P}_end")
    ST.stamp(A); ST.cyc(A)
    A(f"s_load_dwordx2 s[40:41], s[0:1], {40 if which=='o' else 72}")
    A("s_load_dwordx2 s[42:43], s[0:1], 0")
    A("s_load_dwordx2 s[44:45], s[0:1], 80")
    A("s_load_dwordx2 s[46:47], s[0:1], 96")
    A(f"v_and_b32 v{V_L}, 63, v0\nv_lshrrev_b32 v{V_T0}, 6, v0\nv_lshlrev_b32 v{V_L16}, 4, v{V_L}")
    A(f"s_nop 0\nv_readfirstlane_b32 s{S_W}, v{V_T0}")
    A(f"s_and_b32 s3, s2, 7\ns_lshr_b32 s4, s2, 3\ns_and_b32 s5, s4, 3\ns_lshl_b32 s{S_TB}, s3, 2\ns_add_u32 s{S_TB}, s{S_TB}, s5\ns_lshr_b32 s{S_FB}, s4, 2")
    A(f"v_lshrrev_b32 v{V_T0}, 3, v{V_L}\ns_movk_i32 s{S_T}, 896\nv_mul_lo_u32 v{V_T0}, v{V_T0}, s{S_T}")
    A(f"v_and_b32 v{V_T1}, 7, v{V_L}\nv_lshrrev_b32 v{V_T1}, 1, v{V_T1}\nv_lshrrev_b32 v{V_T2}, 4, v{V_L}\nv_xor_b32 v{V_T1}, v{V_T1}, v{V_T2}")
    A(f"v_lshlrev_b32 v{V_T1}, 5, v{V_T1}\nv_and_b32 v{V_T2}, 1, v{V_L}\nv_lshlrev_b32 v{V_T2}, 4, v{V_T2}\nv_add3_u32 v{V_T0}, v{V_T0}, v{V_T1}, v{V_T2}")
    A(f"s_lshl_b32 s{S_T}, s{S_FB}, 7\nv_add_u32 v{V_T0}, s{S_T}, v{V_T0}")
    for n in range(4): A(f"v_add_u32 v{V_WD+n}, {n*(8*896-1024)}, v{V_T0}")
    for n in range(4): A(f"v_add_u32 v{V_BD+n}, {n*NK*1024}, v{V_L16}")
    A(f"v_and_b32 v{V_T0}, 15, v{V_L}\nv_lshrrev_b32 v{V_T0}, 2, v{V_T0}")
    A(f"v_lshrrev_b32 v{V_T1}, 4, v{V_L}")
    A(f"v_lshl_add_u32 v{V_T2}, v{V_T1}, 2, v{V_T0}\nv_lshlrev_b32 v{V_T2}, 7, v{V_T2}")
    A(f"v_lshrrev_b32 v{V_T0}, 1, v{V_T0}\nv_lshl_add_u32 v{V_T0}, v{V_T1}, 1, v{V_T0}\nv_and_b32 v{V_T0}, 3, v{V_T0}")
    A(f"v_and_b32 v{V_T1}, 3, v{V_L}\nv_lshl_add_u32 v{V_T2}, v{V_T1}, 3, v{V_T2}")
    A(f"s_lshl_b32 s{S_M0}, s{S_W}, 14\nv_add_u32 v{V_T2}, s{S_M0}, v{V_T2}")
    for jq in range(4): A(f"v_xor_b32 v{V_T1}, {jq}, v{V_T0}\nv_lshl_add_u32 v{V_RW+jq}, v{V_T1}, 5, v{V_T2}")
    A("s_waitcnt lgkmcnt(0)")
    nrows = 4096 if which == 'o' else 1792
    srd(A, S_A, "s40", "s41", 0, nrows * 896)
    srd(A, S_B, "s46", "s47", CTX if which == 'o' else GB, 128 * NK * 1024)
    if which == 'o':
        srd(A, S_R, "s42", "s43", 0, 2048 * 896)
        srd(A, S_O, "s46", "s47", HB, 2048 * 896)
    else:
        srd(A, S_R, "s46", "s47", HB, 2048 * 896)
        srd(A, S_O, "s44", "s45", 0, 2048 * 896)
    if which == 'o':
        A(f"s_lshl_b32 s{S_T}, s{S_W}, 5\ns_mov_b32 s{S_NIT}, 8")
    else:
        A(f"s_lshl_b32 s{S_T}, s{S_W}, 4\ns_cmp_eq_u32 s{S_W}, 3\ns_cselect_b32 s{S_T}, 44, s{S_T}")
        A(f"s_cmp_ge_u32 s{S_W}, 2\ns_cselect_b32 s{S_NIT}, 3, 4")
    A(f"s_mul_i32 s{S_KW}, s{S_T}, {32*896}")
    A(f"s_lshl_b32 s{S_KB}, s{S_T}, 10\ns_mul_i32 s{S_T}, s{S_TB}, {4*NK*1024}\ns_add_u32 s{S_KB}, s{S_KB}, s{S_T}")
    def issue(step):
        sl = step % NS
        L = [f"s_add_u32 m0, s{S_M0}, {sl*4096}", "s_nop 0"]
        L += [f"buffer_load_dwordx4 v{V_WD+n}, s[{S_A}:{S_A+3}], s{S_KW} offen offset:{n*1024} lds" for n in range(4)]
        L += [f"buffer_load_dwordx4 v[{BS+sl*16+4*n}:{BS+sl*16+4*n+3}], v{V_BD+n}, s[{S_B}:{S_B+3}], s{S_KB} offen" for n in range(4)]
        L += [f"s_add_u32 s{S_KW}, s{S_KW}, {32*896}", f"s_add_u32 s{S_KB}, s{S_KB}, 1024"]
        return L
    def reads(step):
        sl = step % NS; st = step & 1
        return [f"ds_read_b64_tr_b16 v[{AS+st*16+4*j+2*h}:{AS+st*16+4*j+2*h+1}], v{V_RW+j} offset:{sl*4096+h*2048}" for j in range(4) for h in range(2)]
    for s in range(PD):
        for x in issue(s): A(x)
    for i in range(64): A(f"v_accvgpr_write_b32 a{i}, 0")
    A(f"s_waitcnt vmcnt({(PD-1)*8})")
    for x in reads(0): A(x)
    A(f"s_mov_b32 s{S_IT}, 0")
    ST.stamp(A)
    A(f"{P}_loop:")
    for s in range(4):
        main = []
        for mf in range(4):
            for tf in range(4):
                acc = ar((mf * 4 + tf) * 4, 4)
                main.append(f"v_mfma_f32_16x16x32_bf16 {acc}, {vr(AS+(s&1)*16+4*mf,4)}, {vr(BS+(s%NS)*16+4*tf,4)}, {acc}")
        fills = {}
        A(f"s_waitcnt vmcnt({(PD-2)*8}) lgkmcnt(0)")
        rd = reads(s + 1)
        spread(fills, rd, 0, 7)
        iss = issue(s + PD)
        grp = [iss[0:3]] + [[x] for x in iss[3:10]]; grp[-1] = grp[-1] + iss[10:]
        spread(fills, grp, 2, 14)
        interleave(A, main, fills)
    A(f"s_add_u32 s{S_IT}, s{S_IT}, 1\ns_cmp_lt_u32 s{S_IT}, s{S_NIT}\ns_cbranch_scc1 {P}_loop")
    ST.stamp(A)
    A("s_waitcnt vmcnt(0) lgkmcnt(0)\ns_barrier")
    A(f"v_add_u32 v{V_T0}, s{S_M0}, v{V_L16}")
    A("s_nop 7")
    for i in range(16):
        A(f"ds_write_b128 v{V_T0}, a[{4*i}:{4*i+3}] offset:{i*1024}")
    A(f"v_and_b32 v{V_T1}, 15, v{V_L}\ns_lshl_b32 s{S_T}, s{S_TB}, 6\ns_lshl_b32 s29, s{S_W}, 4\ns_add_u32 s{S_T}, s{S_T}, s29\nv_add_u32 v{V_T1}, s{S_T}, v{V_T1}")
    A(f"s_movk_i32 s{S_T}, 896\nv_mul_lo_u32 v{V_T1}, v{V_T1}, s{S_T}")
    A(f"v_lshrrev_b32 v{V_T2}, 4, v{V_L}\nv_lshlrev_b32 v{V_T2}, 3, v{V_T2}\ns_lshl_b32 s{S_T}, s{S_FB}, 7\nv_add3_u32 v{V_OUT}, v{V_T1}, v{V_T2}, s{S_T}")
    for mf in range(4): A(f"buffer_load_dwordx2 v[{TT+2*mf}:{TT+2*mf+1}], v{V_OUT}, s[{S_R}:{S_R+3}], 0 offen offset:{mf*32}")
    A("s_waitcnt lgkmcnt(0)\ns_barrier")
    A(f"s_lshl_b32 s{S_T}, s{S_W}, 10\nv_add_u32 v{V_T0}, s{S_T}, v{V_L16}")
    for mf in range(4):
        for p in range(4):
            A(f"ds_read_b128 v[{32+(mf*4+p)*4}:{32+(mf*4+p)*4+3}], v{V_T0} offset:{p*16384+mf*4096}")
    A("s_waitcnt lgkmcnt(0) vmcnt(0)")
    for mf in range(4):
        b = 32 + mf * 16
        for r in range(4):
            A(f"v_add_f32 v{b+r}, v{b+r}, v{b+4+r}\nv_add_f32 v{b+8+r}, v{b+8+r}, v{b+12+r}\nv_add_f32 v{b+r}, v{b+r}, v{b+8+r}")
        A(f"v_cvt_pk_bf16_f32 v{b+4}, v{b}, v{b+1}\nv_cvt_pk_bf16_f32 v{b+5}, v{b+2}, v{b+3}")
        for k in range(2):
            A(f"v_lshlrev_b32 v{b+8}, 16, v{b+4+k}\nv_and_b32 v{b+9}, 0xffff0000, v{b+4+k}")
            A(f"v_lshlrev_b32 v{b+10}, 16, v{TT+2*mf+k}\nv_and_b32 v{b+11}, 0xffff0000, v{TT+2*mf+k}")
            A(f"v_add_f32 v{b+8}, v{b+8}, v{b+10}\nv_add_f32 v{b+9}, v{b+9}, v{b+11}")
            A(f"v_cvt_pk_bf16_f32 v{b+12+k}, v{b+8}, v{b+9}")
        A(f"buffer_store_dwordx2 v[{b+12}:{b+13}], v{V_OUT}, s[{S_O}:{S_O+3}], 0 offen offset:{mf*32}")
    ST.stamp(A)
    if timing: A("s_waitcnt vmcnt(0)")
    ST.stamp(A); ST.cyc(A)
    ST.flush(A, "s46", "s47", TIM + tim_off)
    A(f"{P}_end:\ns_endpgm")
    return name
```

```python
import sys
from fw import *
from k0 import gen_k0
from k1 import gen_k1, gen_k4
from k3 import gen_k35
from layout import *
from k2 import gen_k2
NAME = "sequential_preLN__compressed_kv_cla__glu_gated_reglu__prompt"
def build(out, upto=99, timing=False):
    ks = []
    ks.append(("k0_ln_kernel", 256, 256, 0, 64, 64, gen_k0))
    ks.append(("k1_proj_kernel", 256, 256, 163840, 512, 256, lambda A: gen_k1(A, timing)))
    ks.append(("k2_attn_kernel", 256, 256, 163840, 512, 256, lambda A: gen_k2(A, timing)))
    ks.append(("k3_oproj_kernel", 224, 256, 65536, 256, 192, lambda A: gen_k35(A, "k3_oproj_kernel", 'o', timing, 2*65536)))
    ks.append(("k3b_ln_kernel", 256, 256, 0, 64, 64, lambda A: gen_k0(A, "k3b_ln_kernel", HB, HN)))
    ks.append(("k4_gateup_kernel", 224, 256, 163840, 512, 256, lambda A: gen_k4(A, timing)))
    ks.append(("k5_down_kernel", 224, 256, 65536, 256, 192, lambda A: gen_k35(A, "k5_down_kernel", 'd', timing, 4*65536)))
    ks = ks[:upto]
    A = Asm()
    for (n, g, b, lds, vg, ac, fn) in ks:
        A(f"; @launch kernel={n} grid=({g},1,1) block=({b},1,1) lds={lds}")
    A('.amdgcn_target "amdgcn-amd-amdhsa--gfx950"\n.text')
    for k in ks: k[6](A)
    A('.section .rodata,"a"')
    for (n, g, b, lds, vg, ac, fn) in ks: kernel_desc(A, n, vg, 102, ac)
    open(out, "w").write(A.text())
if __name__ == "__main__":
    build(sys.argv[1] if len(sys.argv) > 1 else "cur.s", timing=("-t" in sys.argv))
```
